```python
import torch

def _softmax(x, axis=-1):
    return torch.softmax(x, dim=axis)
def _gelu(x):
    return torch.nn.functional.gelu(x, approximate="tanh")
def _silu(x):
    return torch.nn.functional.silu(x)
def _sigmoid(x):
    return torch.sigmoid(x)
def _layernorm(x, axis=-1, eps=1e-5):
    m = x.mean(dim=axis, keepdim=True)
    v = x.var(dim=axis, keepdim=True, unbiased=False)
    return (x - m) / torch.sqrt(v + eps)
def _scatter_add(tgt, idx, src, axis=0):
    return tgt.clone().index_add_(axis, idx, src)
def _segment_sum(src, seg, n):
    out = torch.zeros((n,) + src.shape[1:], dtype=src.dtype)
    return out.index_add_(0, seg, src)
def _pad(x, pw):
    flat = tuple(v for pair in reversed(pw) for v in pair)
    return torch.nn.functional.pad(x, flat)

kernel_name = 'sequential_preLN__sliding_block__glu_gated_reglu__prompt'

def setup_inputs():

    _w = (lambda a: (lambda t: t.to(torch.bfloat16) if t.is_floating_point() else t)(torch.as_tensor(a)))
    def _A_setup():
        B, S, D = 1, 2048, 512
        return {
            "x": _w((lambda *s: torch.randn(*s, dtype=torch.bfloat16) * 0.05)(B, S, D)),
            "wqkv": _w((lambda *s: torch.randn(*s, dtype=torch.bfloat16) * 0.05)(D, 3 * D)),
            "wo": _w((lambda *s: torch.randn(*s, dtype=torch.bfloat16) * 0.05)(D, D)),
        }
    _A_in = _A_setup()

    def _B_setup():
        B, S, D, F = 1, 2048, 512, 1792
        return {
            "x": _w((lambda *s: torch.randn(*s, dtype=torch.bfloat16) * 0.05)(B, S, D)),
            "W_gate": _w((lambda *s: torch.randn(*s, dtype=torch.bfloat16) * 0.8)(D, F) * (2.0 / D) ** 0.5),
            "W_up": _w((lambda *s: torch.randn(*s, dtype=torch.bfloat16) * 0.8)(D, F) * (2.0 / D) ** 0.5),
            "W_down": _w((lambda *s: torch.randn(*s, dtype=torch.bfloat16) * 0.8)(F, D) * (1.0 / F) ** 0.5),
        }
    _B_in = _B_setup()

    return {
        "A_x": _A_in["x"],
        "A_wqkv": _A_in["wqkv"],
        "A_wo": _A_in["wo"],
        "B_x": _B_in["x"],
        "B_W_gate": _B_in["W_gate"],
        "B_W_up": _B_in["W_up"],
        "B_W_down": _B_in["W_down"],
    }

def reference(A_x, A_wqkv, A_wo, B_x, B_W_gate, B_W_up, B_W_down):
    def _A_ref(x, wqkv, wo):
        B, S, D = x.shape
        H = 32; Dh = D // H; W = 256
        qkv = (lambda x, *d: x.permute(*d))((x @ wqkv).reshape(B, S, 3, H, Dh), 2, 0, 3, 1, 4)
        q, k, v = qkv[0], qkv[1], qkv[2]
        scores = torch.einsum("bhqd,bhkd->bhqk", q, k) * (Dh ** -0.5)
        idx = torch.arange(S)
        mask = (idx[:, None] - idx[None, :] >= 0) & (idx[:, None] - idx[None, :] < W)
        scores = torch.where(mask[None, None], scores, -1e9)
        p = _softmax(scores, axis=-1)
        o = torch.einsum("bhqk,bhkd->bhqd", p, v)
        return (lambda x, *d: x.permute(*d))(o, 0, 2, 1, 3).reshape(B, S, D) @ wo

    def _B_ref(x, W_gate, W_up, W_down):
        gate = torch.einsum("bsd,df->bsf", x, W_gate)
        up = torch.einsum("bsd,df->bsf", x, W_up)
        gate = gate * (lambda x, dt: x.to(dt))(gate > 0, gate.dtype)
        h = gate * up
        return torch.einsum("bsf,fd->bsd", h, W_down)

    x = A_x
    h = x + _A_ref(_layernorm(x, axis=-1), A_wqkv, A_wo)
    h2 = h + _B_ref(_layernorm(h, axis=-1), B_W_gate, B_W_up, B_W_down)
    return h2
```

```python
import re

TRANS = ("v_exp_f32", "v_log_f32", "v_rcp_f32", "v_rsq_f32", "v_sqrt_f32", "v_sin_f32", "v_cos_f32")

def regs_of(tok):
    tok = tok.strip()
    tok = tok.lstrip("-")
    if tok.startswith("abs(") or tok.startswith("|"):
        tok = tok.replace("abs(", "").replace(")", "").replace("|", "")
    m = re.fullmatch(r"([vas])\[(\d+):(\d+)\]", tok)
    if m:
        return {f"{m.group(1)}{i}" for i in range(int(m.group(2)), int(m.group(3)) + 1)}
    m = re.fullmatch(r"([vas])(\d+)", tok)
    if m:
        return {tok}
    if tok in ("vcc", "exec", "m0", "vcc_lo", "vcc_hi", "exec_lo", "exec_hi"):
        return {tok.split("_")[0]}
    return set()

class Ins:
    __slots__ = ("text", "op", "ops", "kind", "wr", "rd", "mA", "mB", "mC", "passes", "nop", "wide_store", "lds_dma")
    def __init__(self, text):
        self.text = text
        t = text.split(";")[0].strip()
        parts = t.split(None, 1)
        self.op = parts[0]
        rest = parts[1] if len(parts) > 1 else ""
        ops = [o.strip() for o in rest.split(",")] if rest else []
        mods = ""
        if ops:
            sp = ops[-1].split(None, 1)
            ops[-1] = sp[0]
            mods = sp[1] if len(sp) > 1 else ""
        self.ops = ops
        op = self.op
        self.wr = set(); self.rd = set(); self.mA = self.mB = self.mC = set(); self.passes = 0
        self.nop = 1; self.wide_store = False; self.lds_dma = False
        R = [regs_of(o) for o in ops]
        if op == "s_nop":
            self.kind = "salu"; self.nop = int(ops[0], 0) + 1
        elif op.startswith("v_mfma"):
            self.kind = "mfma"
            self.wr = R[0]; self.mA = R[1]; self.mB = R[2]; self.mC = R[3]
            self.rd = R[1] | R[2] | R[3]
            self.passes = 8 if "32x32" in op else 4
        elif op.startswith("v_"):
            self.kind = "valu"
            if op.startswith("v_permlane32_swap") or op.startswith("v_permlane16_swap") or op.startswith("v_swap"):
                self.wr = R[0] | R[1]; self.rd = R[0] | R[1]
            elif op.startswith("v_cmpx"):
                self.wr = R[0] | {"exec"}; self.rd = set().union(*R[1:])
            elif op in ("v_add_co_u32", "v_sub_co_u32", "v_addc_co_u32", "v_subb_co_u32", "v_mad_u64_u32", "v_div_scale_f32"):
                self.wr = R[0] | R[1]; self.rd = set().union(*R[2:])
            else:
                self.wr = R[0]; self.rd = set().union(*R[1:]) if len(R) > 1 else set()
                if op.startswith("v_fmac") or op.startswith("v_dot2c") or op.startswith("v_writelane") or op.startswith("v_pk_fmac"):
                    self.rd |= R[0]
        elif op.startswith("ds_"):
            self.kind = "ds"
            if "read" in op or "bpermute" in op or "swizzle" in op or "permute" in op:
                self.wr = R[0]; self.rd = set().union(*R[1:])
            else:
                self.rd = set().union(*R)
        elif op.startswith("buffer_") or op.startswith("global_"):
            self.kind = "vmem"
            allm = " " + mods + " "
            if " lds " in allm:
                self.lds_dma = True
                self.rd = set().union(*R) | {"m0"}
            elif "load" in op:
                self.wr = R[0]; self.rd = set().union(*R[1:])
            elif "atomic" in op:
                self.rd = set().union(*R)
                if " sc0 " in allm: self.wr = R[0]
            else:
                self.rd = set().union(*R)
                if "x3" in op or "x4" in op:
                    self.wide_store = True
                    self.mA = R[0] if op.startswith("buffer_") else R[1]
        elif op.startswith("s_"):
            self.kind = "salu"
            if op.startswith("s_cmp") or op.startswith("s_cbranch") or op in ("s_branch", "s_waitcnt", "s_barrier", "s_endpgm", "s_setprio", "s_sleep"):
                self.rd = set().union(*R) if R else set()
            else:
                self.wr = R[0] if R else set(); self.rd = set().union(*R[1:]) if len(R) > 1 else set()
                if "saveexec" in op: self.wr = self.wr | {"exec"}
        else:
            self.kind = "other"

def need(p, c):
    n = 0
    vw = {r for r in p.wr if r[0] in "va" and r != "vcc"}
    sw = {r for r in p.wr if r[0] == "s" or r in ("vcc",)}
    if p.kind == "valu":
        isdot = p.op.startswith("v_dot")
        if c.kind == "mfma" and vw & c.rd: n = max(n, 3 if isdot else 2)
        if c.kind == "valu":
            if c.op.startswith("v_permlane") and vw & c.rd: n = max(n, 2)
            if ("row_" in c.text or "quad_perm" in c.text or "wave_" in c.text or "dpp" in c.op) and vw & c.rd: n = max(n, 2)
            if (c.op.startswith("v_readlane") or c.op.startswith("v_readfirstlane")) and vw & c.rd: n = max(n, 1)
            if p.op in TRANS and c.op not in TRANS and vw & c.rd: n = max(n, 1)
            if p.op in TRANS and c.op in TRANS and vw & c.rd: n = max(n, 1)
            if sw & c.rd:
                n = max(n, 4 if c.op.startswith(("v_readlane", "v_writelane")) else 2)
            if isdot and vw & (c.rd | c.wr):
                same_c = (c.op == p.op) and not (vw & set().union(*[regs_of(o) for o in c.ops[1:3]]))
                if not same_c: n = max(n, 3)
            if "exec" in p.wr and c.op.startswith(("v_readlane", "v_readfirstlane", "v_writelane", "v_permlane")): n = max(n, 4)
            if ("op_sel" in p.text or "sdwa" in p.text) and not p.op.startswith("v_pk") and vw & c.rd: n = max(n, 1)
        if isdot and c.kind in ("ds", "vmem") and vw & c.rd: n = max(n, 3)
        if c.kind == "vmem" and sw & c.rd: n = max(n, 5)
        if c.kind == "mfma" and "exec" in p.wr: n = max(n, 4)
        if p.op in TRANS and c.kind in ("ds", "vmem") and vw & c.rd: n = max(n, 1)
    if p.kind == "mfma":
        big = p.passes == 8
        if c.kind == "mfma":
            if p.wr & (c.mA | c.mB): n = max(n, 12 if big else 8)
            if p.wr & c.mC:
                if not (p.wr == c.mC and p.passes == c.passes): n = max(n, 10 if big else 6)
            elif p.wr & c.wr and not (p.wr == c.wr and p.passes == c.passes):
                n = max(n, 10 if big else 6)
        elif c.kind in ("valu", "ds", "vmem"):
            if p.wr & (c.rd | c.wr): n = max(n, 12 if big else 8)
            if c.kind == "valu" and p.mC & c.wr: n = max(n, 7 if big else 3)
    if p.kind == "salu" and "m0" in p.wr and c.lds_dma: n = max(n, 1)
    if p.wide_store and p.mA & c.wr: n = max(n, 2 if c.kind in ("valu", "mfma") else 1)
    return n

class Asm:
    def __init__(self):
        self.lines = []
        self.head = []
        self.kds = []
        self.uid = 0
        self.vm = []
        self.lg = []
        self.nops_added = 0
    def __call__(self, s):
        for ln in s.split("\n"):
            ln = ln.strip()
            if ln:
                self.lines.append(ln)
    def c(self, s):
        self.lines.append("; " + s)
    def label(self, l):
        self.lines.append(l + ":")
    def newlabel(self, p="L"):
        self.uid += 1
        return f"{p}_{self.uid}"
    def vmem(self, s, tag=None):
        self(s); self.vm.append(tag)
        assert len(self.vm) <= 63, "vmcnt overflow"
    def lds(self, s, tag=None):
        self(s); self.lg.append(tag)
    def _cnt(self, q, tag):
        idx = -1
        for i, t in enumerate(q):
            if t == tag or (isinstance(tag, (list, tuple, set)) and t in tag): idx = i
        return idx
    def wait_vm(self, tag=None):
        if tag is None:
            self("s_waitcnt vmcnt(0)"); self.vm = []; return
        idx = self._cnt(self.vm, tag)
        if idx < 0: return
        n = len(self.vm) - 1 - idx
        self(f"s_waitcnt vmcnt({n})"); self.vm = self.vm[idx + 1:]
    def wait_lg(self, tag=None):
        if tag is None:
            self("s_waitcnt lgkmcnt(0)"); self.lg = []; return
        idx = self._cnt(self.lg, tag)
        if idx < 0: return
        n = len(self.lg) - 1 - idx
        if n > 15:
            n = 15
            self(f"s_waitcnt lgkmcnt(15)"); self.lg = self.lg[len(self.lg) - 15:]
            return
        self(f"s_waitcnt lgkmcnt({n})"); self.lg = self.lg[idx + 1:]
    def launch_single(self, grid, block, lds):
        self.head.append(f"; @launch grid=({grid},1,1) block=({block},1,1) lds={lds}")
    def begin_kernel(self, name):
        self.lines += [f".globl {name}", ".p2align 8", f".type {name},@function", f"{name}:"]
    def end_kernel(self, name, vgpr=256, sgpr=102, accum=None):
        if accum is None:
            accum = min(256, (vgpr + 3) // 4 * 4)
        self.kds.append(f""".amdhsa_kernel {name}
  .amdhsa_next_free_vgpr {vgpr}
  .amdhsa_next_free_sgpr {sgpr}
  .amdhsa_accum_offset {accum}
  .amdhsa_group_segment_fixed_size 0
  .amdhsa_kernarg_size 80
  .amdhsa_user_sgpr_count 2
  .amdhsa_user_sgpr_kernarg_segment_ptr 1
  .amdhsa_system_sgpr_workgroup_id_x 1
  .amdhsa_float_denorm_mode_32 3
  .amdhsa_float_denorm_mode_16_64 3
.end_amdhsa_kernel""")
    def fix_hazards(self, verbose=False):
        out = []
        hist = []
        for ln in self.lines:
            if ln.startswith(";") or ln.startswith(".") or ln.endswith(":"):
                out.append(ln); continue
            ins = Ins(ln)
            req = 0
            dist = 0
            for p in reversed(hist):
                r = need(p, ins) - dist
                if r > req:
                    req = r
                    why = p.text
                dist += p.nop
                if dist > 20: break
            if req > 0:
                if verbose: print(f"nop {req}: {why}  ->  {ln}")
                self.nops_added += req
                k = req
                while k > 0:
                    m = min(k, 16)
                    s = f"s_nop {m-1}"
                    out.append(s); hist.append(Ins(s)); k -= m
            out.append(ln); hist.append(ins)
            if len(hist) > 40: hist = hist[-30:]
        self.lines = out
    def text(self, comment=""):
        out = []
        if comment:
            out += ["; " + c for c in comment.split("\n")]
        out += self.head
        out += ['.amdgcn_target "amdgcn-amd-amdhsa--gfx950"', ".text"]
        out += [(l if (l.endswith(":") or l.startswith(".")) else "    " + l) for l in self.lines]
        out += ['.section .rodata,"a"']
        for kd in self.kds:
            out += [".p2align 6", kd]
        return "\n".join(out) + "\n"
    def srd(self, d, base, nbytes):
        self(f"s_mov_b32 s{d}, s{base}")
        self(f"s_and_b32 s{d+1}, s{base+1}, 0xffff")
        self(f"s_mov_b32 s{d+2}, {nbytes}")
        self(f"s_mov_b32 s{d+3}, 0x20000")

def weave(main, fill, start=0):
    n = len(main) - start
    k = 0
    for i, m in enumerate(main):
        m()
        if i >= start and n > 0:
            upto = (len(fill) * (i - start + 1) + n - 1) // n
            while k < upto:
                fill[k](); k += 1
    while k < len(fill):
        fill[k](); k += 1
```

```python
import sys
from asmx import Asm, weave

NAME = "sequential_preLN__sliding_block__glu_gated_reglu__prompt_kernel"
MB = 1 << 20
CNT = 0
C2I, C4I, C3I, CTGU, CTD, CTO, C1I = 0, 128, 256, 320, 352, 360, 384
KF, VF, OF, HF, ST, CS, WO, WD, WGU, HH, TS = 1*MB, 3*MB, 5*MB, 7*MB, 9*MB, 9*MB + MB//2, 10*MB, 11*MB, 13*MB, 17*MB, 24*MB
CSDUMMY = CS + 0x20000
WSSZ = 32*MB
SPIN = 20000
BIG = 0xF149F2CA
ONES = 0x3F803F80
SX, SW, SWS, SOUT, ST_, SDBG = 8, 12, 16, 20, 24, 28
sW, sR, sC, sRB1, sHG, sRB3, sCG, sRB4, sFG, sROT = 32, 33, 34, 35, 36, 37, 38, 39, 40, 41
sT0, sT1, sT2, sT3, sT4, sT5 = 42, 43, 44, 45, 46, 47
sHI = 48
sTsrc, sTstr, sTdst, sTnt, sTcs, sTcnt, sTx = 50, 51, 52, 53, 54, 55, 56
sSPIN, sONES, sKV, sM0 = 57, 58, 59, 60
sA, sB = 61, 62
KA = 64
sTS = 84
XROW = 1040
KVS0 = 66560
SMALL = KVS0 + 11*8192
L_STAT, L_CSX, L_RSTD = SMALL, SMALL + 512, SMALL + 2048
L_AEX = SMALL + 4096
def kvslot(i): return KVS0 + 8192*i
def xslot(i): return 8192*i
def kv_lds(c): return kvslot(c) if c < 11 else xslot(c - 11)
def q_lds(q): return xslot(5 + q) if q < 3 else kvslot(q - 3)

def v(i, n=1): return f"v{i}" if n == 1 else f"v[{i}:{i+n-1}]"
def ar(i, n=1): return f"a{i}" if n == 1 else f"a[{i}:{i+n-1}]"
def s(i, n=1): return f"s{i}" if n == 1 else f"s[{i}:{i+n-1}]"
def srd(i): return s(i, 4)
MF = "v_mfma_f32_32x32x16_bf16"

class G:
    def __init__(self, stop=99, ts=False):
        self.a = Asm(); self.stop = stop; self.ts = ts; self.nts = 0
    def stamp(self):
        if not self.ts: return
        a = self.a
        a("s_memtime s[4:5]")
        a("s_waitcnt lgkmcnt(0)"); a.lg = []
        a(f"s_mov_b32 s{sTS + self.nts}, s4")
        self.nts += 1
    def poll(self, vOff, soff, tgt, emask, vT):
        a = self.a
        lp = a.newlabel("poll"); dn = a.newlabel("polld")
        a(f"s_mov_b64 exec, {emask}")
        a(f"s_mov_b32 s{sSPIN}, 0")
        a.label(lp)
        a(f"v_mov_b32 {v(vT)}, 0")
        a(f"buffer_atomic_add {v(vT)}, {v(vOff)}, {srd(SWS)}, {soff} offen sc0 sc1")
        a("s_waitcnt vmcnt(0)"); a.vm = []
        a(f"v_cmp_gt_u32 vcc, {tgt}, {v(vT)}")
        a(f"s_cbranch_vccz {dn}")
        a(f"s_add_u32 s{sSPIN}, s{sSPIN}, 1")
        a(f"s_cmp_lt_u32 s{sSPIN}, {SPIN}")
        a(f"s_cbranch_scc1 {lp}")
        a.label(dn)
        a("s_mov_b64 exec, -1")
    def signal(self, vOff, soff, emask, vOne):
        a = self.a
        a(f"s_mov_b64 exec, {emask}")
        a.vmem(f"buffer_atomic_add {v(vOne)}, {v(vOff)}, {srd(SWS)}, {soff} offen sc1", "sig")
        a("s_mov_b64 exec, -1")
    def split_pack(self, d, c, t):
        a = self.a
        a(f"v_cvt_pk_bf16_f32 {v(t)}, {v(c)}, {v(c)}")
        a(f"v_and_b32 {v(t)}, 0xffff0000, {v(t)}")
        a(f"v_sub_f32 {v(d)}, {v(c)}, {v(t)}")
        a(f"v_cvt_pk_bf16_f32 {v(d)}, {v(t)}, {v(d)}")
    def neg_mean_frag(self, d, mu, t0, t1):
        a = self.a
        a(f"v_cvt_pk_bf16_f32 {v(t0)}, -{v(mu)}, -{v(mu)}")
        a(f"v_and_b32 {v(t1)}, 0xffff0000, {v(t0)}")
        a(f"v_sub_f32 {v(t1)}, -{v(mu)}, {v(t1)}")
        a(f"v_cvt_pk_bf16_f32 {v(t1)}, {v(t1)}, {v(t1)}")
        a(f"v_cndmask_b32 {v(d)}, {v(t0)}, {v(t1)}, {s(sHI,2)}")
    def half_sum(self, x, t):
        a = self.a
        a(f"v_mov_b32 {v(t)}, {v(x)}")
        a(f"v_permlane32_swap_b32 {v(x)}, {v(t)}")
        a(f"v_add_f32 {v(x)}, {v(x)}, {v(t)}")

    vL, vL16, vZ, vOne = 0, 1, 2, 3

    def prologue(self):
        a = self.a
        a("s_cmp_ge_u32 s2, 256")
        a("s_cbranch_scc1 L_end")
        a(f"s_load_dwordx16 {s(KA,16)}, s[0:1], 0")
        a(f"s_load_dwordx4 {s(KA+16,4)}, s[0:1], 64")
        if self.ts:
            a("s_memtime s[4:5]")
        a("v_lshrrev_b32 v4, 6, v0")
        a("v_and_b32 v0, 63, v0")
        a(f"v_readfirstlane_b32 s{sW}, v4")
        a(f"v_lshlrev_b32 {v(self.vL16)}, 4, v0")
        a(f"v_mov_b32 {v(self.vZ)}, 0")
        a(f"v_mov_b32 {v(self.vOne)}, 1")
        a(f"s_lshr_b32 s{sT0}, s2, 3")
        a(f"s_bfe_u32 s{sT1}, s2, 0x20001")
        a(f"s_and_b32 s{sT2}, s2, 1")
        a(f"s_and_b32 s{sT3}, s{sT0}, 7")
        a(f"s_lshl_b32 s{sROT}, s{sT3}, 1")
        a(f"s_lshl3_add_u32 s{sRB1}, s{sT1}, s{sT3}")
        a(f"s_lshr_b32 s{sT3}, s{sT0}, 3")
        a(f"s_lshl2_add_u32 s{sHG}, s{sT2}, s{sT3}")
        a(f"s_and_b32 s{sT3}, s{sT0}, 3")
        a(f"s_lshl2_add_u32 s{sRB4}, s{sT1}, s{sT3}")
        a(f"s_lshl2_add_u32 s{sT4}, s{sT2}, s{sT3}")
        a(f"s_lshl3_add_u32 s{sRB3}, s{sT1}, s{sT4}")
        a(f"s_lshr_b32 s{sCG}, s{sT0}, 2")
        a(f"s_lshl3_add_u32 s{sFG}, s{sT2}, s{sCG}")
        a(f"s_and_b32 s{sR}, s{sW}, 1")
        a(f"s_lshr_b32 s{sC}, s{sW}, 1")
        a(f"s_mov_b32 s{sHI}, 0")
        a(f"s_mov_b32 s{sHI+1}, -1")
        a(f"s_mov_b32 s{sONES}, {ONES}")

    def p1(self):
        a = self.a
        vWo, vWo2, vTR, vXA, vT, vT2 = 4, 5, 6, 9, 10, 11
        vS = 12
        vCs = 16
        vMu, vRs, vInit = 18, 19, 28
        BX = 20
        AX = 24
        WB = 32
        XF = 64
        aK, aV, aQ, RV = 192, 208, 224, 240
        a(f"v_lshrrev_b32 {v(vT)}, 3, v0")
        a(f"v_mul_u32_u24 {v(vWo)}, 3072, {v(vT)}")
        a(f"v_lshlrev_b32 {v(vT)}, 1, {v(vT)}")
        a(f"v_and_b32 {v(vT)}, 4, {v(vT)}")
        a(f"v_and_b32 {v(vT2)}, 7, v0")
        a(f"v_xor_b32 {v(vT)}, {v(vT)}, {v(vT2)}")
        a(f"v_lshl_add_u32 {v(vWo)}, {v(vT)}, 4, {v(vWo)}")
        a(f"v_add_u32 {v(vWo2)}, {16*3072-1024}, {v(vWo)}")
        a("s_waitcnt lgkmcnt(0)")
        if self.ts:
            a(f"s_mov_b32 s{sTS}, s4"); self.nts = 1
        a.srd(SX, KA+0, 2048*1024)
        a.srd(SW, KA+2, 512*3072)
        a.srd(SWS, KA+18, WSSZ)
        lz = a.newlabel("nz")
        a("s_cmp_lg_u32 s2, 0")
        a(f"s_cbranch_scc1 {lz}")
        a(f"v_lshlrev_b32 {v(vT)}, 7, v0")
        a(f"s_lshl_b32 s{sT0}, s{sW}, 15")
        for i in range(4):
            a(f"buffer_store_dword {v(self.vZ)}, {v(vT)}, {srd(SWS)}, s{sT0} offen sc1")
            a(f"s_add_u32 s{sT0}, s{sT0}, 8192")
        a.label(lz)
        a(f"s_lshl_b32 s{sT0}, s{sHG}, 2")
        a(f"s_lshl_b32 s{sT1}, s{sW}, 4")
        a(f"s_lshl_b32 s{sT2}, s{sRB1}, 16")
        for i in range(16):
            a(f"s_add_u32 s{sT3}, s{sT0}, {i}")
            a(f"s_and_b32 s{sT3}, s{sT3}, 15")
            a(f"s_add_u32 s{sT3}, s{sT3}, s{sT1}")
            a(f"s_mul_i32 m0, s{sT3}, {XROW}")
            a(f"s_lshl_b32 s{sT3}, s{sT3}, 10")
            a(f"s_add_u32 s{sT3}, s{sT3}, s{sT2}")
            a.vmem(f"buffer_load_dwordx4 {v(self.vL16)}, {srd(SX)}, s{sT3} offen lds", "x")
        a(f"s_mul_i32 s{sKV}, s{sW}, {8*3072}")
        a(f"s_lshl_b32 s{sT0}, s{sHG}, 7")
        a(f"s_add_u32 s{sKV}, s{sKV}, s{sT0}")
        a(f"s_add_u32 s{sKV}, s{sKV}, 1024")
        a(f"s_lshl_b32 s{sM0}, s{sW}, 11")
        a(f"s_lshl_b32 s{sT1}, s{sC}, 2")
        a(f"s_add_u32 s{sT1}, s{sT1}, s{sR}")
        a(f"s_mul_i32 s{sA}, s{sT1}, {8*3072}")
        a(f"s_add_u32 s{sA}, s{sA}, s{sT0}")
        def kv_issue(c):
            a(f"s_add_u32 s{sT3}, s{sROT}, {c}")
            a(f"s_and_b32 s{sT3}, s{sT3}, 15")
            a(f"s_mul_i32 s{sT3}, s{sT3}, {32*3072}")
            a(f"s_add_u32 m0, s{sM0}, {kv_lds(c)}")
            a(f"s_add_u32 s{sT3}, s{sT3}, s{sKV}")
            a.vmem(f"buffer_load_dwordx4 {v(vWo)}, {srd(SW)}, s{sT3} offen lds", f"kv{c}")
            a.vmem(f"buffer_load_dwordx4 {v(vWo)}, {srd(SW)}, s{sT3} offen offset:1024 lds", f"kv{c}")
        def q_issue(q):
            a(f"s_add_u32 s{sT3}, s{sROT}, {2*q}")
            a(f"s_and_b32 s{sT3}, s{sT3}, 15")
            a(f"s_mul_i32 s{sT3}, s{sT3}, {32*3072}")
            a(f"s_add_u32 m0, s{sM0}, {q_lds(q)}")
            a(f"s_add_u32 s{sT3}, s{sT3}, s{sA}")
            a.vmem(f"buffer_load_dwordx4 {v(vWo)}, {srd(SW)}, s{sT3} offen lds", f"q{q}")
            a.vmem(f"buffer_load_dwordx4 {v(vWo2)}, {srd(SW)}, s{sT3} offen offset:1024 lds", f"q{q}")
        for c in range(11): kv_issue(c)
        a.srd(SOUT, KA+14, 2048*1024)
        a.srd(SDBG, KA+16, 256)
        a(f"v_bfe_u32 {v(vT)}, v0, 2, 2")
        a(f"v_lshlrev_b32 {v(vTR)}, 7, {v(vT)}")
        a(f"v_lshrrev_b32 {v(vT2)}, 5, v0")
        a(f"v_lshl_add_u32 {v(vTR)}, {v(vT2)}, 11, {v(vTR)}")
        a(f"v_lshlrev_b32 {v(vT)}, 5, {v(vT)}")
        a(f"v_and_b32 {v(vT)}, 64, {v(vT)}")
        a(f"s_lshl_b32 s{sT0}, s{sC}, 6")
        a(f"v_xor_b32 {v(vT)}, s{sT0}, {v(vT)}")
        a(f"v_add_u32 {v(vTR)}, {v(vTR)}, {v(vT)}")
        a(f"v_and_b32 {v(vT)}, 16, v0")
        a(f"v_lshl_add_u32 {v(vTR)}, {v(vT)}, 1, {v(vTR)}")
        a(f"v_and_b32 {v(vT)}, 3, v0")
        a(f"v_lshl_add_u32 {v(vTR)}, {v(vT)}, 3, {v(vTR)}")
        a(f"v_add_u32 {v(vTR+1)}, 0x10000, {v(vTR)}")
        a(f"v_add_u32 {v(vTR+2)}, 0x20000, {v(vTR)}")
        a(f"v_and_b32 {v(vXA)}, 31, v0")
        a(f"s_lshl_b32 s{sT0}, s{sR}, 5")
        a(f"v_add_u32 {v(vXA)}, s{sT0}, {v(vXA)}")
        a(f"v_mul_u32_u24 {v(vXA)}, {XROW}, {v(vXA)}")
        a(f"v_lshl_add_u32 {v(vXA)}, {v(vT2)}, 4, {v(vXA)}")
        for i in range(4): a(f"v_mov_b32 {v(vS+i)}, 0")
        for i in range(2): a(f"v_mov_b32 {v(vCs+i)}, 0")
        for i in range(20, 30): a(f"v_mov_b32 {v(i)}, 0")
        def trd(dst, ldsaddr, tag):
            a.lds(f"ds_read_b64_tr_b16 {v(dst,2)}, {v(vTR + (ldsaddr >> 16))} offset:{ldsaddr & 0xffff}", tag)
        def kv_reads(c):
            out = []
            for ksl in range(2):
                for mat in range(2):
                    for h2 in range(2):
                        d = WB + 16*(c & 1) + 8*ksl + 4*mat + 2*h2
                        out.append(lambda d=d, ad=kv_lds(c) + ksl*4096 + mat*1024 + h2*512: trd(d, ad, f"kvr{c}"))
            return out
        a.wait_vm("x")
        lz = a.newlabel("nz")
        a("s_cmp_lg_u32 s2, 0")
        a(f"s_cbranch_scc1 {lz}")
        a("s_mov_b64 exec, 1")
        a(f"buffer_atomic_add {v(self.vOne)}, {v(self.vZ)}, {srd(SDBG)}, 0 offen sc1")
        a("s_mov_b64 exec, -1")
        a("s_waitcnt vmcnt(0)")
        a.label(lz)
        a("s_barrier")
        self.stamp()
        l1 = a.newlabel("st"); l2 = a.newlabel("st")
        a(f"s_cmp_eq_u32 s{sC}, 0")
        a(f"s_cbranch_scc0 {l1}")
        for var in range(2):
            if var == 1: a.label(l1)
            a.lg = []
            def rd(c):
                a(f"s_add_u32 s{sT3}, s{sROT}, {c}")
                a(f"s_and_b32 s{sT3}, s{sT3}, 15")
                a(f"s_lshl_b32 s{sT3}, s{sT3}, 6")
                a(f"v_add_u32 {v(vT + (c & 1))}, s{sT3}, {v(vXA)}")
                a.lds(f"ds_read_b128 {v(XF+8*c,4)}, {v(vT + (c & 1))}", f"xr{c}")
                a.lds(f"ds_read_b128 {v(XF+8*c+4,4)}, {v(vT + (c & 1))} offset:32", f"xr{c}")
            for c in range(3): rd(c)
            for c in range(16):
                if c + 3 < 16: rd(c + 3)
                a.wait_lg(f"xr{c}")
                for i in range(8):
                    x = v(XF + 8*c + i)
                    a(f"v_dot2_f32_bf16 {v(vS + (i & 3))}, {x}, {x if var else s(sONES)}, {v(vS + (i & 3))}")
            if var == 0: a(f"s_branch {l2}")
        a.label(l2)
        a("s_nop 2")
        a(f"v_add_f32 {v(vS)}, {v(vS)}, {v(vS+1)}")
        a(f"v_add_f32 {v(vS+2)}, {v(vS+2)}, {v(vS+3)}")
        a(f"v_add_f32 {v(vS)}, {v(vS)}, {v(vS+2)}")
        self.half_sum(vS, vS+1)
        a(f"v_and_b32 {v(vT)}, 31, v0")
        a(f"v_lshlrev_b32 {v(vT)}, 3, {v(vT)}")
        a(f"s_lshl_b32 s{sT0}, s{sR}, 8")
        a(f"s_add_u32 s{sT0}, s{sT0}, {L_STAT}")
        a(f"v_add_u32 {v(vT)}, s{sT0}, {v(vT)}")
        a(f"s_lshl_b32 s{sT0}, s{sC}, 2")
        a(f"v_add_u32 {v(vT2)}, s{sT0}, {v(vT)}")
        a.lds(f"ds_write_b32 {v(vT2)}, {v(vS)}")
        a.wait_lg()
        a.wait_vm("kv0")
        a("s_barrier")
        a.lds(f"ds_read_b64 {v(vS,2)}, {v(vT)}", "stat")
        for f in kv_reads(0): f()
        for c in range(11, 16): kv_issue(c)
        for q in range(3): q_issue(q)
        a.vmem(f"buffer_load_dword {v(vInit)}, {v(self.vZ)}, {srd(SDBG)}, 0 offen sc1", "init")
        a.wait_lg("stat")
        a(f"v_mul_f32 {v(vMu)}, {1.0/512!r}, {v(vS)}".replace(repr(1.0/512), "0x3b000000"))
        a(f"v_mul_f32 {v(vRs)}, 0x3b000000, {v(vS+1)}")
        a(f"v_fma_f32 {v(vRs)}, -{v(vMu)}, {v(vMu)}, {v(vRs)}")
        a(f"v_max_f32 {v(vRs)}, 0, {v(vRs)}")
        a(f"v_add_f32 {v(vRs)}, 0x3727c5ac, {v(vRs)}")
        a(f"v_rsq_f32 {v(vRs)}, {v(vRs)}")
        self.neg_mean_frag(BX, vMu, vS, vS+1)
        a(f"v_and_b32 {v(vT)}, 31, v0")
        a(f"s_lshl_b32 s{sT0}, s{sW}, 7")
        a(f"s_add_u32 s{sT0}, s{sT0}, {L_RSTD}")
        a(f"v_lshl_add_u32 {v(vT)}, {v(vT)}, 2, s{sT0}")
        a.lds(f"ds_write_b32 {v(vT)}, {v(vRs)}", "rw")
        a(f"v_lshrrev_b32 {v(vT)}, 5, v0")
        a(f"v_lshl_add_u32 {v(vT)}, {v(vT)}, 4, s{sT0}")
        for i in range(4):
            a.lds(f"ds_read_b128 {v(RV+4*i,4)}, {v(vT)} offset:{32*i}", "rv")
        l1 = a.newlabel("kv"); l2 = a.newlabel("kv")
        a(f"s_cmp_eq_u32 s{sR}, 0")
        a(f"s_cbranch_scc0 {l1}")
        vm0, lg0 = list(a.vm), list(a.lg)
        for var in range(2):
            if var == 1: a.label(l1)
            a.vm, a.lg = list(vm0), list(lg0)
            for c in range(16):
                a.wait_lg(f"kvr{c}")
                fill = []
                if c < 15:
                    a.wait_vm(f"kv{c+1}")
                    a("s_barrier")
                    fill += kv_reads(c + 1)
                    if c < 5: fill.append(lambda c=c: q_issue(c + 3))
                b = WB + 16*(c & 1)
                dots = []
                for ksl in range(2):
                    for i in range(4):
                        dots.append(lambda r=b + 8*ksl + 4*var + i, i=i: a(f"v_dot2_f32_bf16 {v(vCs + (i & 1))}, {v(r)}, s{sONES}, {v(vCs + (i & 1))}"))
                mm = []
                for ksl in range(2):
                    x = v(XF + 8*c + 4*ksl, 4)
                    c0 = (c == 0 and ksl == 0)
                    mm.append(lambda x=x, w=v(b + 8*ksl, 4), c0=c0: a(f"{MF} {v(aK,16)}, {w}, {x}, {0 if c0 else v(aK,16)}"))
                    mm.append(lambda x=x, w=v(b + 8*ksl + 4, 4), c0=c0: a(f"{MF} {v(aV,16)}, {x}, {w}, {0 if c0 else v(aV,16)}"))
                if c < 15:
                    weave(mm, fill + dots)
                else:
                    for f in dots: f()
                    a(f"v_add_f32 {v(vCs)}, {v(vCs)}, {v(vCs+1)}")
                    self.half_sum(vCs, vCs+1)
                    a(f"v_and_b32 {v(vT)}, 31, v0")
                    a(f"s_lshl_b32 s{sT0}, s{sC}, 8")
                    a(f"s_add_u32 s{sT0}, s{sT0}, {L_CSX}")
                    a(f"v_lshl_add_u32 {v(vT)}, {v(vT)}, 2, s{sT0}")
                    a.lds(f"ds_write_b32 {v(vT)}, {v(vCs)} offset:{128*var}")
                    mm[0]()
                    a.wait_lg()
                    a.wait_vm("q0")
                    a("s_barrier")
                    a.lds(f"ds_read2_b32 {v(vCs,2)}, {v(vT)} offset0:0 offset1:32", "csx")
                    for f in mm[1:]: f()
            if var == 0: a(f"s_branch {l2}")
        a.label(l2)
        def q_reads(q):
            out = []
            for ksl in range(4):
                for h2 in range(2):
                    d = WB + 16*(q & 1) + 4*ksl + 2*h2
                    out.append(lambda d=d, ad=q_lds(q) + (ksl >> 1)*4096 + (ksl & 1)*1024 + h2*512: trd(d, ad, f"qr{q}"))
            return out
        for f in q_reads(0): f()
        a.wait_lg("csx")
        self.split_pack(AX, vCs, vT)
        self.split_pack(AX+2, vCs+1, vT)
        a(f"{MF} {v(aK,16)}, {v(AX,4)}, {v(BX,4)}, {v(aK,16)}")
        a(f"{MF} {v(aV,16)}, {v(BX,4)}, {v(AX+2,4)}, {v(aV,16)}")
        self.stamp()
        a(f"s_lshl_b32 s{sT0}, s{sHG}, 1")
        a(f"s_add_u32 s{sT0}, s{sT0}, s{sC}")
        a(f"s_lshl_b32 s{sT0}, s{sT0}, 7")
        a(f"s_lshl1_add_u32 s{sT1}, s{sRB1}, s{sR}")
        a(f"s_add_u32 s{sT0}, s{sT0}, s{sT1}")
        a(f"s_lshl_b32 s{sT0}, s{sT0}, 10")
        a(f"s_add_u32 s{sT1}, s{sT0}, {KF}")
        a(f"s_add_u32 s{sT2}, s{sT0}, {KF + 65536}")
        a(f"s_add_u32 s{sT0}, s{sT0}, {VF}")
        a(f"v_and_b32 {v(vT)}, 16, v0")
        a(f"v_lshlrev_b32 {v(vT)}, 12, {v(vT)}")
        a(f"v_lshrrev_b32 {v(vT2)}, 5, v0")
        a(f"v_lshl_add_u32 {v(vT)}, {v(vT2)}, 8, {v(vT)}")
        a(f"v_and_b32 {v(vT2)}, 15, v0")
        a(f"v_lshl_add_u32 {v(vT)}, {v(vT2)}, 4, {v(vT)}")
        for i in range(16): a(f"v_mul_f32 {v(aK+i)}, {v(aK+i)}, {v(vRs)}")
        for i in range(8): a(f"v_cvt_pk_bf16_f32 {v(aK+i)}, {v(aK+2*i)}, {v(aK+2*i+1)}")
        a.vmem(f"buffer_store_dwordx4 {v(aK,4)}, {v(self.vL16)}, {srd(SWS)}, s{sT1} offen sc1", "kvst")
        a.vmem(f"buffer_store_dwordx4 {v(aK+4,4)}, {v(self.vL16)}, {srd(SWS)}, s{sT2} offen sc1", "kvst")
        for i in range(16): a(f"v_mul_f32 {v(aV+i)}, {v(aV+i)}, {v(RV+i)}")
        for i in range(8): a(f"v_cvt_pk_bf16_f32 {v(aV+i)}, {v(aV+2*i)}, {v(aV+2*i+1)}")
        a.vmem(f"buffer_store_dwordx4 {v(aV,4)}, {v(vT)}, {srd(SWS)}, s{sT0} offen sc1", "kvst")
        a.vmem(f"buffer_store_dwordx4 {v(aV+4,4)}, {v(vT)}, {srd(SWS)}, s{sT0} offen offset:512 sc1", "kvst")
        self.t_issue(vT, vT2)
        for i in range(2): a(f"v_mov_b32 {v(vCs+i)}, 0")
        for q in range(8):
            a.wait_lg(f"qr{q}")
            fill = []
            if q < 7:
                a.wait_vm(f"q{q+1}")
                a("s_barrier")
                fill += q_reads(q + 1)
            b = WB + 16*(q & 1)
            for i in range(16):
                fill.append(lambda r=b + i, i=i: a(f"v_dot2_f32_bf16 {v(vCs + (i & 1))}, {v(r)}, s{sONES}, {v(vCs + (i & 1))}"))
            mm = []
            for ksl in range(4):
                c0 = (q == 0 and ksl == 0)
                mm.append(lambda x=v(XF + 16*q + 4*ksl, 4), w=v(b + 4*ksl, 4), c0=c0: a(f"{MF} {v(aQ,16)}, {w}, {x}, {0 if c0 else v(aQ,16)}"))
            weave(mm, fill)
        a(f"v_add_f32 {v(vCs)}, {v(vCs)}, {v(vCs+1)}")
        self.half_sum(vCs, vCs+1)
        self.split_pack(AX, vCs, vT)
        a(f"{MF} {v(aQ,16)}, {v(AX,4)}, {v(BX,4)}, {v(aQ,16)}")
        a.wait_vm("kvst")
        lp = a.newlabel("ini"); dn = a.newlabel("inid")
        a(f"s_mov_b32 s{sSPIN}, 0")
        a.label(lp)
        a(f"v_readfirstlane_b32 s{sT0}, {v(vInit)}")
        a(f"s_cmp_ge_u32 s{sT0}, 4")
        a(f"s_cbranch_scc1 {dn}")
        a(f"buffer_load_dword {v(vInit)}, {v(self.vZ)}, {srd(SDBG)}, 0 offen sc1")
        a("s_waitcnt vmcnt(0)")
        a(f"s_add_u32 s{sSPIN}, s{sSPIN}, 1")
        a(f"s_cmp_lt_u32 s{sSPIN}, {SPIN}")
        a(f"s_cbranch_scc1 {lp}")
        a.label(dn)
        a(f"s_lshl3_add_u32 s{sB}, s{sRB1}, s{sHG}")
        a(f"s_lshl1_add_u32 s{sB}, s{sB}, s{sC}")
        a(f"s_add_u32 s{sB}, s{sB}, {C1I}")
        a(f"s_lshl_b32 s{sKV}, s{sB}, 7")
        a(f"v_lshlrev_b32 {v(vT)}, 11, v0")
        self.signal(vT, f"s{sKV}", "31", self.vOne)
        self.stamp()
        a(f"v_mul_f32 {v(vRs)}, 0x3eb8aa3b, {v(vRs)}")
        for i in range(16): a(f"v_mul_f32 {v(aQ+i)}, {v(aQ+i)}, {v(vRs)}")
        for i in range(8): a(f"v_cvt_pk_bf16_f32 {v(aQ+i)}, {v(aQ+2*i)}, {v(aQ+2*i+1)}")
        a(f"s_lshl_b32 s{sT0}, s{sC}, 12")
        a(f"s_lshl_b32 s{sT1}, s{sR}, 10")
        a(f"s_add_u32 s{sT0}, s{sT0}, s{sT1}")
        a(f"s_add_u32 s{sT0}, s{sT0}, {kvslot(8)}")
        a(f"v_add_u32 {v(vT)}, s{sT0}, {v(self.vL16)}")
        a.lds(f"ds_write_b128 {v(vT)}, {v(aQ,4)}")
        a.lds(f"ds_write_b128 {v(vT)}, {v(aQ+4,4)} offset:2048")
        a(f"s_add_u32 s{sT0}, s{sM0}, {kvslot(8)}")
        a(f"v_add_u32 {v(vT)}, s{sT0}, {v(self.vL16)}")
        a.wait_lg()
        a("s_barrier")
        a.lds(f"ds_read_b128 {ar(120,4)}, {v(vT)}", "qf")
        a.lds(f"ds_read_b128 {ar(124,4)}, {v(vT)} offset:1024", "qf")

    def t_issue(self, vT, vT2):
        a = self.a
        vTo = 30
        sk = a.newlabel("tsk"); l1 = a.newlabel("t"); l2 = a.newlabel("t"); l3 = a.newlabel("t")
        a(f"s_mul_i32 s{sT0}, s2, 3")
        a(f"s_add_u32 s{sT0}, s{sT0}, s{sW}")
        a(f"s_cmp_eq_u32 s{sW}, 3")
        a(f"s_cselect_b32 s{sT0}, 1000, s{sT0}")
        a(f"s_cmp_lt_u32 s{sT0}, 448")
        a(f"s_cbranch_scc0 {l1}")
        a(f"s_and_b32 s{sT1}, s{sT0}, 1")
        a(f"s_bfe_u32 s{sT2}, s{sT0}, 0x30001")
        a(f"s_lshr_b32 s{sT3}, s{sT0}, 4")
        a(f"s_cmp_eq_u32 s{sT1}, 0")
        a(f"s_cselect_b32 s{ST_}, s{KA+8}, s{KA+10}")
        a(f"s_cselect_b32 s{ST_+1}, s{KA+9}, s{KA+11}")
        a(f"s_mov_b32 s{ST_+2}, {512*3584}")
        a(f"s_mov_b32 s{sTstr}, 3584")
        a(f"s_lshl_b32 s{sTdst}, s{sT3}, 17")
        a(f"s_lshl_b32 s{sT4}, s{sT1}, 8")
        a(f"s_add_u32 s{sTdst}, s{sTdst}, s{sT4}")
        a(f"s_add_u32 s{sTdst}, s{sTdst}, {WGU}")
        a(f"s_mov_b32 s{sTnt}, 65536")
        a(f"s_mov_b32 s{sTx}, 32768")
        a(f"s_lshl3_add_u32 s{sT4}, s{sT1}, s{sT2}")
        a(f"s_mul_i32 s{sTcs}, s{sT4}, 7168")
        a(f"s_lshl_b32 s{sT4}, s{sT3}, 8")
        a(f"s_add_u32 s{sTcs}, s{sTcs}, s{sT4}")
        a(f"s_add_u32 s{sTcs}, s{sTcs}, {CS}")
        a(f"s_add_u32 s{sTcnt}, s{sT3}, {CTGU}")
        a(f"s_branch {l3}")
        a.label(l1)
        a(f"s_mov_b32 s{sTstr}, 1024")
        a(f"s_mov_b32 s{sTx}, 256")
        a(f"s_mov_b32 s{sTcs}, {CSDUMMY}")
        a(f"s_cmp_lt_u32 s{sT0}, 672")
        a(f"s_cbranch_scc0 {l2}")
        a(f"s_sub_u32 s{sT0}, s{sT0}, 448")
        a(f"s_and_b32 s{sT3}, s{sT0}, 7")
        a(f"s_lshr_b32 s{sT2}, s{sT0}, 3")
        a(f"s_mov_b32 s{ST_}, s{KA+12}")
        a(f"s_mov_b32 s{ST_+1}, s{KA+13}")
        a(f"s_mov_b32 s{ST_+2}, {1792*1024}")
        a(f"s_mul_i32 s{sTdst}, s{sT3}, {2*112*1024}")
        a(f"s_add_u32 s{sTdst}, s{sTdst}, {WD}")
        a(f"s_mov_b32 s{sTnt}, {112*1024}")
        a(f"s_add_u32 s{sTcnt}, s{sT3}, {CTD}")
        a(f"s_branch {l3}")
        a.label(l2)
        a(f"s_sub_u32 s{sT0}, s{sT0}, 672")
        a(f"s_and_b32 s{sT3}, s{sT0}, 7")
        a(f"s_bfe_u32 s{sT2}, s{sT0}, 0x30003")
        a(f"s_mov_b32 s{ST_}, s{KA+4}")
        a(f"s_mov_b32 s{ST_+1}, s{KA+5}")
        a(f"s_mov_b32 s{ST_+2}, {512*1024}")
        a(f"s_lshl_b32 s{sTdst}, s{sT3}, 16")
        a(f"s_add_u32 s{sTdst}, s{sTdst}, {WO}")
        a(f"s_mov_b32 s{sTnt}, {32*1024}")
        a(f"s_add_u32 s{sTcnt}, s{sT3}, {CTO}")
        a(f"s_cmp_lt_u32 s{sT0}, 64")
        a(f"s_cselect_b32 s{sTcnt}, s{sTcnt}, 0")
        a(f"s_cselect_b32 s{ST_+2}, s{ST_+2}, 0")
        a.label(l3)
        a(f"s_and_b32 s{ST_+1}, s{ST_+1}, 0xffff")
        a(f"s_mov_b32 s{ST_+3}, 0x20000")
        a(f"s_lshl_b32 s{sT4}, s{sT2}, 12")
        a(f"s_add_u32 s{sTdst}, s{sTdst}, s{sT4}")
        a(f"s_lshl_b32 s{sT4}, s{sTstr}, 6")
        a(f"s_mul_i32 s{sTsrc}, s{sT2}, s{sT4}")
        a(f"s_lshl_b32 s{sT4}, s{sT3}, 7")
        a(f"s_add_u32 s{sTsrc}, s{sTsrc}, s{sT4}")
        a(f"v_lshrrev_b32 {v(vT)}, 3, v0")
        a(f"v_mul_lo_u32 {v(vTo)}, s{sTstr}, {v(vT)}")
        a(f"v_lshlrev_b32 {v(vT)}, 1, {v(vT)}")
        a(f"v_and_b32 {v(vT)}, 4, {v(vT)}")
        a(f"v_and_b32 {v(vT2)}, 7, v0")
        a(f"v_xor_b32 {v(vT)}, {v(vT)}, {v(vT2)}")
        a(f"v_lshl_add_u32 {v(vTo)}, {v(vT)}, 4, {v(vTo)}")
        a(f"s_lshl_b32 s{sT4}, s{sTstr}, 3")
        a(f"s_cmp_eq_u32 s{sW}, 3")
        a(f"s_cselect_b32 s{sT5}, 4, s{sW}")
        a(f"s_lshl_b32 s{sT5}, s{sT5}, 13")
        a(f"s_add_u32 s{sT5}, s{sT5}, {kvslot(5)}")
        for p in range(8):
            a(f"s_add_u32 m0, s{sT5}, {1024*p}")
            a.vmem(f"buffer_load_dwordx4 {v(vTo)}, {srd(ST_)}, s{sTsrc} offen lds", "tl")
            if p < 7: a(f"s_add_u32 s{sTsrc}, s{sTsrc}, s{sT4}")
        a(f"s_mov_b32 s{sTsrc}, s{sT5}")

    def t_run(self):
        a = self.a
        vT, vT2, vA0, vA1, vD = 10, 11, 12, 13, 14
        vC = 16; F = 32
        sk = a.newlabel("tsk")
        a.wait_vm("tl")
        a(f"s_cmp_eq_u32 s{sTcnt}, 0")
        a(f"s_cbranch_scc1 {sk}")
        vm0, lg0 = list(a.vm), list(a.lg)
        a(f"v_bfe_u32 {v(vT)}, v0, 2, 2")
        a(f"v_lshrrev_b32 {v(vT2)}, 5, v0")
        a(f"v_lshl_add_u32 {v(vA0)}, {v(vT2)}, 2, {v(vT)}")
        a(f"v_lshl_add_u32 {v(vA0)}, {v(vA0)}, 7, s{sTsrc}")
        a(f"v_lshlrev_b32 {v(vT)}, 5, {v(vT)}")
        a(f"v_and_b32 {v(vT)}, 64, {v(vT)}")
        a(f"v_add_u32 {v(vA0)}, {v(vA0)}, {v(vT)}")
        a(f"v_and_b32 {v(vT)}, 16, v0")
        a(f"v_lshl_add_u32 {v(vA0)}, {v(vT)}, 1, {v(vA0)}")
        a(f"v_and_b32 {v(vT)}, 3, v0")
        a(f"v_lshl_add_u32 {v(vA0)}, {v(vT)}, 3, {v(vA0)}")
        a(f"v_xor_b32 {v(vA1)}, 64, {v(vA0)}")
        for nt in range(2):
            for ks in range(4):
                for h2 in range(2):
                    a.lds(f"ds_read_b64_tr_b16 {v(F + 16*nt + 4*ks + 2*h2, 2)}, {v(vA0+nt)} offset:{(2*ks+h2)*1024}", f"tr{nt}")
        a(f"v_bfe_u32 {v(vT)}, v0, 4, 1")
        a(f"v_mul_lo_u32 {v(vD)}, s{sTx}, {v(vT)}")
        a(f"v_lshl_add_u32 {v(vD)}, {v(vT2)}, 9, {v(vD)}")
        a(f"v_and_b32 {v(vT)}, 15, v0")
        a(f"v_lshl_add_u32 {v(vD)}, {v(vT)}, 4, {v(vD)}")
        a(f"s_add_u32 s{sTnt}, s{sTnt}, s{sTdst}")
        a(f"v_mov_b32 {v(vC)}, 0")
        a(f"v_mov_b32 {v(vC+1)}, 0")
        for nt in range(2):
            a.wait_lg(f"tr{nt}")
            for ks in range(4):
                a.vmem(f"buffer_store_dwordx4 {v(F + 16*nt + 4*ks, 4)}, {v(vD)}, {srd(SWS)}, s{sTnt if nt else sTdst} offen offset:{1024*ks} sc1", "ts")
            for i in range(16):
                a(f"v_dot2_f32_bf16 {v(vC+nt)}, {v(F + 16*nt + i)}, s{sONES}, {v(vC+nt)}")
        a(f"v_permlane32_swap_b32 {v(vC)}, {v(vC+1)}")
        a(f"v_add_f32 {v(vC)}, {v(vC)}, {v(vC+1)}")
        a(f"v_lshlrev_b32 {v(vT)}, 2, v0")
        a.vmem(f"buffer_store_dword {v(vC)}, {v(vT)}, {srd(SWS)}, s{sTcs} offen sc1", "ts")
        a.wait_vm()
        a(f"s_lshl_b32 s{sTcnt}, s{sTcnt}, 7")
        self.signal(self.vZ, f"s{sTcnt}", "1", self.vOne)
        a.label(sk)
        a.vm = vm0 + ["sig"]; a.lg = []
        a("s_waitcnt lgkmcnt(0)")

    def p2(self):
        a = self.a
        vT, vT2, vM = 10, 11, 12
        P = 16
        SB = 32
        O = 80
        MD, MO = 112, 128
        NM = 144
        CD, CO = 176, 208
        aKf, aVf, aQf = 0, 40, 120
        a(f"v_mov_b32 {v(vT)}, s{sONES}")
        for i in range(80): a(f"v_accvgpr_write_b32 {ar(aVf+i)}, {v(vT)}")
        a(f"v_and_b32 {v(vT)}, 31, v0")
        a(f"v_lshrrev_b32 {v(vT2)}, 5, v0")
        a(f"v_lshlrev_b32 {v(vT2)}, 2, {v(vT2)}")
        a(f"v_sub_u32 {v(vT)}, {v(vT)}, {v(vT2)}")
        a(f"v_mov_b32 {v(vT2)}, {BIG}")
        for r in range(16):
            a(f"v_cmp_le_i32 vcc, {(r & 3) + 8*(r >> 2)}, {v(vT)}")
            a(f"v_cndmask_b32 {v(MD+r)}, {v(vT2)}, {v(self.vZ)}, vcc")
            a(f"v_cndmask_b32 {v(MO+r)}, {v(self.vZ)}, {v(vT2)}, vcc")
        for i in range(32): a(f"v_mov_b32 {v(O+i)}, 0")
        a(f"v_mov_b32 {v(vM)}, {v(vT2)}")
        a(f"v_mov_b32 {v(vM+1)}, {v(vT2)}")
        a(f"s_lshl2_add_u32 s{sT0}, s{sHG}, s{sW}")
        a(f"s_lshl_b32 s{sT0}, s{sT0}, 5")
        a(f"s_add_u32 s{sT0}, s{sT0}, s{sRB1}")
        a(f"s_lshl_b32 s{sT0}, s{sT0}, 11")
        a(f"s_add_u32 s{sT1}, s{sT0}, {KF - 8192}")
        a(f"s_add_u32 s{sT2}, s{sT0}, {VF - 8192}")
        a(f"v_lshrrev_b32 {v(vT2)}, 5, v0")
        a(f"v_lshlrev_b32 {v(vT2)}, 8, {v(vT2)}")
        a(f"v_and_b32 {v(vT)}, 15, v0")
        a(f"v_lshl_add_u32 {v(vT2)}, {v(vT)}, 4, {v(vT2)}")
        a(f"s_min_u32 s{sT3}, s{sRB1}, 4")
        a(f"s_lshl1_add_u32 s{sT3}, s{sT3}, 2")
        self.poll(self.vZ, f"s{sKV}", f"s{sT3}", "1", vT)
        self.stamp()
        for i in range(10):
            if i % 4 == 0 and i: a(f"s_add_u32 s{sT1}, s{sT1}, 4096")
            a.vmem(f"buffer_load_dwordx4 {ar(aKf+4*i,4)}, {v(self.vL16)}, {srd(SWS)}, s{sT1} offen offset:{1024*(i%4)} sc1", "kf")
        a("s_mov_b32 exec_lo, 0xffff")
        a("s_mov_b32 exec_hi, 0xffff")
        for i in range(20):
            if i % 8 == 0 and i: a(f"s_add_u32 s{sT2}, s{sT2}, 4096")
            a.vmem(f"buffer_load_dwordx4 {ar(aVf+4*i,4)}, {v(vT2)}, {srd(SWS)}, s{sT2} offen offset:{512*(i%8)} sc1", "vf")
        a("s_mov_b64 exec, -1")
        jobs = [(0, 0)]
        for i in range(1, 9): jobs += [(0, i), (1, i)]
        jobs.append((1, 9))
        first = {i0: jobs.index((0, i0)) for i0 in (0, 2, 4, 6, 8)}
        def kind(q, i): return "old" if i == q else ("diag" if i == 8 + q else "mid")
        def entry(pre, labels):
            ents = {i0: a.newlabel("ae") for i0 in first}
            for i0 in (2, 4, 6, 8):
                a(f"s_cmp_eq_u32 s{sRB1}, {(8 - i0)//2}")
                a(f"s_cbranch_scc1 {ents[i0]}")
            pre(first[0])
            self.tail.append(lambda: [ (a.label(ents[i0]), pre(first[i0]), a("s_nop 7"), a("s_nop 7"), a(f"s_branch {labels[first[i0]]}")) for i0 in (2, 4, 6, 8)])
        def s1(j):
            q, i = jobs[j]
            c = {"old": v(MO,16), "diag": v(MD,16), "mid": "0"}[kind(q, i)]
            a(f"{MF} {v(SB+16*(j%3),16)}, {ar(aKf+4*i,4)}, {ar(aQf+4*q,4)}, {c}")
        a.wait_lg()
        a.wait_vm("kf")
        lab = {j: a.newlabel("p1s") for j in first.values()}
        entry(lambda j: (s1(j), s1(j+1)), lab)
        for j in range(18):
            if j in lab: a.label(lab[j])
            if j + 2 < 18: s1(j + 2)
            q = jobs[j][0]; b = SB + 16*(j % 3)
            for i in range(8):
                a(f"v_max3_f32 {v(vM+q)}, {v(b+2*i)}, {v(b+2*i+1)}, {v(vM+q)}")
        for q in range(2):
            a(f"v_mov_b32 {v(vT)}, {v(vM+q)}")
            a(f"v_permlane32_swap_b32 {v(vM+q)}, {v(vT)}")
            a(f"v_max_f32 {v(vM+q)}, {v(vM+q)}, {v(vT)}")
            for i in range(16): a(f"v_sub_f32 {v(NM+16*q+i)}, 0, {v(vM+q)}")
            for i in range(16): a(f"v_sub_f32 {v(CD+16*q+i)}, {v(MD+i)}, {v(vM+q)}")
            for i in range(16): a(f"v_sub_f32 {v(CO+16*q+i)}, {v(MO+i)}, {v(vM+q)}")
        def s2(j):
            q, i = jobs[j]
            c = {"old": CO, "diag": CD, "mid": NM}[kind(q, i)] + 16*q
            a(f"{MF} {v(SB+16*(j%2),16)}, {ar(aKf+4*i,4)}, {ar(aQf+4*q,4)}, {v(c,16)}")
        a.wait_vm("vf")
        lab = {j: a.newlabel("p2s") for j in first.values()}
        entry(s2, lab)
        for j in range(18):
            if j in lab: a.label(lab[j])
            if j + 1 < 18: s2(j + 1)
            q, i = jobs[j]; b = SB + 16*(j % 2)
            ex = lambda k: a(f"v_exp_f32 {v(b+k)}, {v(b+k)}")
            cv = lambda k: a(f"v_cvt_pk_bf16_f32 {v(P+k)}, {v(b+2*k)}, {v(b+2*k+1)}")
            pv = lambda h: a(f"{MF} {v(O+16*q,16)}, {ar(aVf+8*i+4*h,4)}, {v(P+4*h,4)}, {v(O+16*q,16)}")
            ex(0); ex(1); ex(2); cv(0); ex(3); ex(4); cv(1); ex(5); ex(6); cv(2); ex(7); ex(8); cv(3); ex(9); ex(10)
            pv(0); cv(4); ex(11); ex(12); cv(5); ex(13); ex(14); cv(6); ex(15)
            a("s_nop 0"); cv(7); a("s_nop 1"); pv(1)
        a(f"s_lshl_b32 s{sT0}, s{sRB1}, 6")
        a(f"s_lshl2_add_u32 s{sT1}, s{sHG}, s{sW}")
        a(f"s_add_u32 s{sT0}, s{sT0}, s{sT1}")
        a(f"s_lshl_b32 s{sT0}, s{sT0}, 10")
        a(f"s_add_u32 s{sT0}, s{sT0}, {OF}")
        a(f"s_add_u32 s{sT1}, s{sT0}, 32768")
        for q in range(2):
            o = O + 16*q
            a(f"v_rcp_f32 {v(o+8)}, {v(o+8)}")
            for i in range(8): a(f"v_mul_f32 {v(o+i)}, {v(o+i)}, {v(o+8)}")
            for i in range(4): a(f"v_cvt_pk_bf16_f32 {v(o+i)}, {v(o+2*i)}, {v(o+2*i+1)}")
            a.vmem(f"buffer_store_dwordx4 {v(o,4)}, {v(self.vL16)}, {srd(SWS)}, s{sT0+q} offen sc1", "ost")
        a(f"s_lshr_b32 s{sT0}, s{sHG}, 1")
        a(f"s_lshl2_add_u32 s{sT0}, s{sRB1}, s{sT0}")
        a(f"s_lshl_b32 s{sT0}, s{sT0}, 7")
        if C2I: a(f"s_add_u32 s{sT0}, s{sT0}, {C2I*128}")
        a.wait_vm()
        self.signal(self.vZ, f"s{sT0}", "1", self.vOne)
        self.stamp()

    RING = 144
    RED = 96*1024
    def ring_issue(self, q0, n):
        a = self.a
        for g in range(n // 16):
            q = q0 + 16*g
            a(f"s_add_u32 m0, s{sM0}, {(q % self.RING)*1024}")
            a(f"s_add_u32 s{sT3}, s{sA}, {q*1024}")
            for i in range(4):
                a.vmem(f"buffer_load_dwordx4 {v(self.vL16)}, {srd(SWS)}, s{sT3} offen offset:{1024*i} sc1 lds", f"w{q//16}")

    def splitk(self, nks, Areg, bsrc, acc, BR, nb, cinit):
        a = self.a
        vT = 10
        total = 2*nks
        def ld(i):
            rp, ks = divmod(i, nks)
            if ks % 4 == 0 and ks: a(f"s_add_u32 s{bsrc+rp}, s{bsrc+rp}, 4096")
            a.vmem(f"buffer_load_dwordx4 {v(BR+4*(i%nb),4)}, {v(self.vL16)}, {srd(SWS)}, s{bsrc+rp} offen offset:{1024*(ks%4)} sc1", f"b{i}")
        for i in range(min(nb, total)): ld(i)
        def red_write(rp, ap):
            x = 2*(1-rp) + (1-ap)
            a(f"s_xor_b32 s{sT3}, s{sW}, {x}")
            a(f"s_mul_i32 s{sT3}, s{sT3}, 12288")
            a(f"s_add_u32 s{sT3}, s{sT3}, {self.RED + (x-1)*4096}")
            a(f"v_add_u32 {v(vT)}, s{sT3}, {v(self.vL16)}")
            for i in range(4):
                a.lds(f"ds_write_b128 {v(vT)}, {v(acc + 32*rp + 16*ap + 4*i, 4)} offset:{1024*i}")
        for i in range(total):
            rp, ks = divmod(i, nks)
            a.wait_vm(f"b{i}")
            for ap in range(2):
                d = v(acc + 32*rp + 16*ap, 16)
                c = d if (ks > 0 or (cinit and rp == 1 and ap == 1)) else "0"
                a(f"{MF} {d}, {Areg(ap, ks)}, {v(BR+4*(i%nb),4)}, {c}")
            if i + nb < total: ld(i + nb)
            if rp == 1 and ks == 3:
                red_write(0, 0); red_write(0, 1)
        red_write(1, 0)
        a(f"s_mul_i32 s{sT3}, s{sW}, 12288")
        a(f"s_add_u32 s{sT3}, s{sT3}, {self.RED}")
        a(f"v_add_u32 {v(vT)}, s{sT3}, {v(self.vL16)}")
        a.wait_lg()
        a("s_barrier")
        for k in range(3):
            for i in range(4):
                a.lds(f"ds_read_b128 {v(acc + 16*k + 4*i, 4)}, {v(vT)} offset:{4096*k + 1024*i}", f"rd{k}")
        for k in range(3):
            a.wait_lg(f"rd{k}")
            for i in range(8):
                a(f"v_pk_add_f32 {v(acc+48+2*i,2)}, {v(acc+48+2*i,2)}, {v(acc+16*k+2*i,2)}")

    def p3(self):
        a = self.a
        vT, vT2, vT3 = 10, 11, 12
        XR = 16
        CSV = 24
        acc, BR = 64, 128
        aW = 128
        a(f"s_mul_i32 s{sT0}, s{sFG}, 7")
        a(f"s_lshr_b32 s{sT0}, s{sT0}, 2")
        a(f"s_add_u32 s{sT0}, s{sT0}, {CTGU - 2}")
        a(f"v_add_u32 {v(vT2)}, s{sT0}, v0")
        a(f"v_min_u32 {v(vT2)}, {CTGU + 27}, {v(vT2)}")
        a(f"s_add_u32 s{sT1}, s{sCG}, {CTO}")
        a(f"v_writelane_b32 {v(vT2)}, s{sT1}, 0")
        a(f"s_add_u32 s{sT1}, s{sCG}, {CTD}")
        a(f"v_writelane_b32 {v(vT2)}, s{sT1}, 1")
        a(f"v_lshlrev_b32 {v(vT2)}, 7, {v(vT2)}")
        a(f"v_mov_b32 {v(vT3)}, 16")
        a(f"v_writelane_b32 {v(vT3)}, 8, 0")
        a(f"v_writelane_b32 {v(vT3)}, 28, 1")
        self.poll(vT2, "0", v(vT3), "31", vT)
        for ap in range(2):
            a(f"s_xor_b32 s{sT0}, s{sR}, {1-ap}")
            a(f"s_lshl1_add_u32 s{sT0}, s{sCG}, s{sT0}")
            a(f"s_lshl2_add_u32 s{sT0}, s{sT0}, s{sW}")
            a(f"s_lshl_b32 s{sT0}, s{sT0}, 13")
            a(f"s_add_u32 s{sT0}, s{sT0}, {WO}")
            for ks in range(8):
                if ks == 4: a(f"s_add_u32 s{sT0}, s{sT0}, 4096")
                a.vmem(f"buffer_load_dwordx4 {ar(aW+32*ap+4*ks,4)}, {v(self.vL16)}, {srd(SWS)}, s{sT0} offen offset:{1024*(ks%4)} sc1", "wo")
        a(f"v_and_b32 {v(vT)}, 31, v0")
        a(f"v_lshlrev_b32 {v(vT)}, 10, {v(vT)}")
        a(f"v_lshrrev_b32 {v(vT2)}, 5, v0")
        a(f"v_lshl_add_u32 {v(vT)}, {v(vT2)}, 3, {v(vT)}")
        a(f"s_lshl1_add_u32 s{sT0}, s{sRB3}, s{sC}")
        a(f"s_lshl_b32 s{sT0}, s{sT0}, 15")
        a(f"s_lshl1_add_u32 s{sT1}, s{sCG}, s{sR}")
        a(f"s_lshl_b32 s{sT1}, s{sT1}, 6")
        a(f"s_add_u32 s{sT0}, s{sT0}, s{sT1}")
        for i in range(4):
            a.vmem(f"buffer_load_dwordx2 {v(XR+2*i,2)}, {v(vT)}, {srd(SX)}, s{sT0} offen offset:{16*i}", "xr")
        a(f"s_lshl_b32 s{sT0}, s{sW}, 1")
        a(f"v_add_u32 {v(vT2)}, s{sT0}, {v(vT2)}")
        a(f"v_min_u32 {v(vT2)}, 6, {v(vT2)}")
        a(f"v_and_b32 {v(vT)}, 15, v0")
        a(f"v_lshl_add_u32 {v(vT)}, {v(vT2)}, 4, {v(vT)}")
        a(f"v_lshlrev_b32 {v(vT)}, 2, {v(vT)}")
        a(f"v_bfe_u32 {v(vT3)}, v0, 4, 1")
        a(f"v_mul_u32_u24 {v(vT3)}, {8*7168}, {v(vT3)}")
        a(f"v_add_u32 {v(vT)}, {v(vT)}, {v(vT3)}")
        a(f"s_mul_i32 s{sT0}, s{sFG}, 448")
        a(f"s_add_u32 s{sT0}, s{sT0}, {CS}")
        for kb in range(8):
            a.vmem(f"buffer_load_dword {v(CSV+kb)}, {v(vT)}, {srd(SWS)}, s{sT0} offen sc1", "cs")
            if kb < 7: a(f"s_add_u32 s{sT0}, s{sT0}, 7168")
        a("s_barrier")
        a(f"s_lshl_b32 s{sM0}, s{sW}, 12")
        a(f"s_mul_i32 s{sA}, s{sFG}, {7*32768}")
        a(f"s_add_u32 s{sA}, s{sA}, s{sM0}")
        a(f"s_add_u32 s{sA}, s{sA}, {WGU}")
        self.ring_issue(0, 96)
        a.wait_vm("cs")
        for st in (1, 2, 4):
            for i in range(0, 8, 2*st): a(f"v_add_f32 {v(CSV+i)}, {v(CSV+i)}, {v(CSV+i+st)}")
        self.split_pack(CSV+1, CSV, vT)
        a(f"v_and_b32 {v(vT)}, 31, v0")
        a(f"v_lshl_add_u32 {v(vT)}, {v(vT2)}, 5, {v(vT)}")
        a(f"v_lshlrev_b32 {v(vT)}, 2, {v(vT)}")
        a(f"v_add_u32 {v(vT)}, {L_AEX}, {v(vT)}")
        a.lds(f"ds_write_b32 {v(vT)}, {v(CSV+1)}")
        for i in range(8):
            a(f"v_lshlrev_b32 {v(acc+48+2*i)}, 16, {v(XR+i)}")
            a(f"v_and_b32 {v(acc+48+2*i+1)}, 0xffff0000, {v(XR+i)}")
        a(f"s_lshl2_add_u32 s{sT0}, s{sRB3}, s{sW}")
        a(f"s_lshl_b32 s{sT0}, s{sT0}, 7")
        for rp in range(2):
            a(f"s_xor_b32 s{sT1}, s{sC}, {1-rp}")
            a(f"s_lshl1_add_u32 s{sT1}, s{sRB3}, s{sT1}")
            a(f"s_lshl2_add_u32 s{sT1}, s{sT1}, s{sW}")
            a(f"s_lshl_b32 s{sT1}, s{sT1}, 13")
            a(f"s_add_u32 s{sT4+rp}, s{sT1}, {OF}")
        self.poll(self.vZ, f"s{sT0}", "8", "1", vT)
        self.stamp()
        self.splitk(8, lambda ap, ks: ar(aW+32*ap+4*ks, 4), sT4, acc, BR, 16, True)
        H = acc + 48
        for i in range(8): a(f"v_cvt_pk_bf16_f32 {v(H+i)}, {v(H+2*i)}, {v(H+2*i+1)}")
        a(f"s_lshl1_add_u32 s{sT0}, s{sRB3}, s{sC}")
        a(f"s_lshl1_add_u32 s{sT1}, s{sCG}, s{sR}")
        a(f"s_lshl4_add_u32 s{sT2}, s{sT0}, s{sT1}")
        a(f"s_lshl_b32 s{sT2}, s{sT2}, 11")
        a(f"s_add_u32 s{sT2}, s{sT2}, {HF}")
        a.vmem(f"buffer_store_dwordx4 {v(H,4)}, {v(self.vL16)}, {srd(SWS)}, s{sT2} offen sc1", "hs")
        a.vmem(f"buffer_store_dwordx4 {v(H+4,4)}, {v(self.vL16)}, {srd(SWS)}, s{sT2} offen offset:1024 sc1", "hs")
        S0 = 14
        a(f"v_mov_b32 {v(S0)}, 0")
        a(f"v_mov_b32 {v(S0+1)}, 0")
        for i in range(8):
            a(f"v_dot2_f32_bf16 {v(S0)}, {v(H+i)}, s{sONES}, {v(S0)}")
            a(f"v_dot2_f32_bf16 {v(S0+1)}, {v(H+i)}, {v(H+i)}, {v(S0+1)}")
        a(f"v_permlane32_swap_b32 {v(S0)}, {v(S0+1)}")
        a(f"v_add_f32 {v(S0)}, {v(S0)}, {v(S0+1)}")
        a(f"s_lshl4_add_u32 s{sT2}, s{sT0}, s{sT1}")
        a(f"s_lshl_b32 s{sT2}, s{sT2}, 8")
        a(f"s_add_u32 s{sT2}, s{sT2}, {ST}")
        a(f"v_lshlrev_b32 {v(vT)}, 2, v0")
        a.vmem(f"buffer_store_dword {v(S0)}, {v(vT)}, {srd(SWS)}, s{sT2} offen sc1", "hs")
        for i in range(8): a(f"v_accvgpr_write_b32 {ar(240+i)}, {v(H+i)}")
        a(f"s_add_u32 s{sT0}, s{sT0}, {C3I}")
        a(f"s_lshl_b32 s{sT0}, s{sT0}, 7")
        a.wait_vm()
        self.signal(self.vZ, f"s{sT0}", "1", self.vOne)
        self.stamp()

    def stats_load(self, dst, srg, vT):
        a = self.a
        a(f"s_lshl_b32 s{sT3}, s{srg}, 12")
        a(f"s_add_u32 s{sT3}, s{sT3}, {ST}")
        a(f"v_lshlrev_b32 {v(vT)}, 2, v0")
        for i in range(16):
            a.vmem(f"buffer_load_dword {v(dst+i)}, {v(vT)}, {srd(SWS)}, s{sT3} offen offset:{256*i} sc1", "st")
    def stats_reduce(self, dst):
        a = self.a
        a.wait_vm("st")
        for st in (1, 2, 4, 8):
            for i in range(0, 16, 2*st): a(f"v_add_f32 {v(dst+i)}, {v(dst+i)}, {v(dst+i+st)}")
        a(f"v_mov_b32 {v(dst+1)}, {v(dst)}")
        a(f"v_permlane32_swap_b32 {v(dst)}, {v(dst+1)}")

    def p4(self):
        a = self.a
        vT, vT2 = 10, 11
        vRA = 4
        BX = 12
        SS = 16
        AB = 40; NAB = 6
        acc = 64; HR = 128
        aAX = 224
        a(f"v_add_u32 {v(vRA+1)}, 0x10000, {v(self.vL16)}")
        a(f"v_add_u32 {v(vRA+2)}, 0x20000, {v(self.vL16)}")
        a(f"v_mov_b32 {v(vRA)}, {v(self.vL16)}")
        for i in range(1, 4): a(f"v_mov_b32 {v(BX+i)}, 0")
        for i in range(16): a(f"v_accvgpr_write_b32 {ar(aAX+i)}, 0")
        a(f"s_lshl2_add_u32 s{sB}, s{sRB4}, s{sW}")
        a(f"s_add_u32 s{sT0}, s{sB}, {C3I}")
        a(f"s_lshl_b32 s{sT0}, s{sT0}, 7")
        a(f"s_lshl_b32 s{sT1}, s{sB}, 15")
        a(f"s_add_u32 s{sT1}, s{sT1}, {HF}")
        self.poll(self.vZ, f"s{sT0}", "16", "1", vT)
        self.stamp()
        for ks in range(32):
            if ks % 4 == 0 and ks: a(f"s_add_u32 s{sT1}, s{sT1}, 4096")
            a.vmem(f"buffer_load_dwordx4 {v(HR+4*ks,4)}, {v(self.vL16)}, {srd(SWS)}, s{sT1} offen offset:{1024*(ks%4)} sc1", f"h{ks}")
        self.stats_load(SS, sB, vT)
        a("s_barrier")
        self.ring_issue(96, 48)
        a(f"v_and_b32 {v(vT)}, 31, v0")
        a(f"v_lshlrev_b32 {v(vT)}, 2, {v(vT)}")
        a(f"v_add_u32 {v(vT)}, {L_AEX}, {v(vT)}")
        for t in range(7):
            a.lds(f"ds_read_b32 {ar(aAX+2*t)}, {v(vT)} offset:{128*t}", "ax")
        order = [(t, ks) for ks in range(32) for t in range(3)] + [(t, ks) for t in range(3, 7) for ks in range(32)]
        def slot(t, ks): return (32*t + ks) % self.RING
        def rd(n):
            t, ks = order[n]
            ad = slot(t, ks)*1024
            a.lds(f"ds_read_b128 {v(AB+4*(n%NAB),4)}, {v(vRA + (ad >> 16))} offset:{ad & 0xffff}", f"a{n}")
        accof = {0: 0, 1: 1, 2: 2, 3: 3, 4: 0, 5: 1, 6: 2}
        a(f"s_mul_i32 s{sT4}, s{sB}, 112")
        a(f"s_mul_i32 s{sT5}, s{sFG}, 7")
        a(f"s_add_u32 s{sT4}, s{sT4}, s{sT5}")
        a(f"s_lshl_b32 s{sT4}, s{sT4}, 10")
        a(f"s_add_u32 s{sT4}, s{sT4}, {HH}")
        a(f"s_add_u32 s{sT5}, s{sT4}, 4096")
        for ap in range(2):
            a(f"s_xor_b32 s{sT0}, s{sR}, {1-ap}")
            a(f"s_lshl1_add_u32 s{sT0}, s{sCG}, s{sT0}")
            a(f"s_lshl2_add_u32 s{sT0}, s{sT0}, s{sW}")
            a(f"s_mul_i32 s{sT0}, s{sT0}, {28*1024}")
            a(f"s_add_u32 s{sTsrc+ap}, s{sT0}, {WD}")
        def wd_load(i):
            ap, ks = divmod(i, 28)
            if ks % 4 == 0 and ks: a(f"s_add_u32 s{sTsrc+ap}, s{sTsrc+ap}, 4096")
            a.vmem(f"buffer_load_dwordx4 {ar(112*ap+4*ks,4)}, {v(self.vL16)}, {srd(SWS)}, s{sTsrc+ap} offen offset:{1024*(ks%4)} sc1", "wd")
        def epi(t):
            d = acc + 16*accof[t]
            e = SS + 4*(t % 4)
            out = []
            for i in range(8): out.append(lambda i=i: a(f"v_max_f32 {v(d+i)}, 0, {v(d+i)}"))
            for i in range(8): out.append(lambda i=i: a(f"v_mul_f32 {v(d+i)}, {v(d+i)}, {v(d+8+i)}"))
            for i in range(4): out.append(lambda i=i: a(f"v_cvt_pk_bf16_f32 {v(e+i)}, {v(d+2*i)}, {v(d+2*i+1)}"))
            out.append(lambda: a.vmem(f"buffer_store_dwordx4 {v(e,4)}, {v(self.vL16)}, {srd(SWS)}, s{sT4 + t//4} offen offset:{1024*(t%4)} sc1", "hh"))
            return out
        PD = NAB - 1
        for n in range(PD): rd(n)
        pend = []
        wdn = [0]
        N = len(order)
        for n in range(N):
            t, ks = order[n]
            nn = n + PD
            if nn < N and nn >= 96 and nn % 16 == 0:
                a.wait_vm(f"w{nn//16}")
                a("s_barrier")
                if nn == 112: self.ring_issue(144, 80)
            if n < 96 and t == 0: a.wait_vm(f"h{ks}")
            a.wait_lg(f"a{n}")
            d = v(acc + 16*accof[t], 16)
            a(f"{MF} {d}, {v(AB+4*(n%NAB),4)}, {v(HR+4*ks,4)}, {d if ks else 0}")
            if nn < N: rd(nn)
            if n == 92:
                self.stats_reduce(SS)
                a(f"v_mul_f32 {v(SS)}, 0x3b000000, {v(SS)}")
                self.neg_mean_frag(BX, SS, vT, vT2)
            if ks == 31 and (t >= 2):
                ts = (0, 1, 2) if t == 2 else (t,)
                for u in ts:
                    dd = v(acc + 16*accof[u], 16)
                    a(f"{MF} {dd}, {ar(aAX+2*u,4)}, {v(BX,4)}, {dd}")
                pend.append(None); pend.append(None)
                for u in ts: pend += epi(u)
            for _ in range(2):
                if pend:
                    f = pend.pop(0)
                    if f: f()
            if n >= 112 and n % 2 == 0 and wdn[0] < 56:
                wd_load(wdn[0]); wdn[0] += 1
        for f in pend:
            if f: f()
        while wdn[0] < 56:
            wd_load(wdn[0]); wdn[0] += 1
        a(f"s_lshr_b32 s{sT0}, s{sB}, 1")
        a(f"s_lshr_b32 s{sT1}, s{sFG}, 2")
        a(f"s_lshl2_add_u32 s{sT0}, s{sT0}, s{sT1}")
        a(f"s_add_u32 s{sT0}, s{sT0}, {C4I}")
        a(f"s_lshl_b32 s{sT0}, s{sT0}, 7")
        a.wait_vm()
        self.signal(self.vZ, f"s{sT0}", "1", self.vOne)
        self.stamp()

    def p5(self):
        a = self.a
        vT, vT2 = 10, 11
        SS = 16
        acc, BR = 32, 96
        a(f"s_lshl1_add_u32 s{sB}, s{sRB3}, s{sC}")
        a(f"s_lshl2_add_u32 s{sT0}, s{sRB3}, s{sW}")
        a(f"s_add_u32 s{sT0}, s{sT0}, {C4I}")
        a(f"s_lshl_b32 s{sT0}, s{sT0}, 7")
        for rp in range(2):
            a(f"s_xor_b32 s{sT1}, s{sC}, {1-rp}")
            a(f"s_lshl1_add_u32 s{sT1}, s{sRB3}, s{sT1}")
            a(f"s_lshl2_add_u32 s{sT1}, s{sT1}, s{sW}")
            a(f"s_mul_i32 s{sT1}, s{sT1}, {28*1024}")
            a(f"s_add_u32 s{sT4+rp}, s{sT1}, {HH}")
        self.poll(self.vZ, f"s{sT0}", "8", "1", vT)
        a("s_barrier")
        self.stamp()
        self.stats_load(SS, sB, vT)
        self.stats_reduce(SS)
        a(f"v_mul_f32 {v(SS)}, 0x3b000000, {v(SS)}")
        a(f"v_mul_f32 {v(SS+1)}, 0x3b000000, {v(SS+1)}")
        a(f"v_fma_f32 {v(SS+1)}, -{v(SS)}, {v(SS)}, {v(SS+1)}")
        a(f"v_max_f32 {v(SS+1)}, 0, {v(SS+1)}")
        a(f"v_add_f32 {v(SS+1)}, 0x3727c5ac, {v(SS+1)}")
        a(f"v_rcp_f32 {v(12)}, {v(SS+1)}")
        for i in range(8):
            a(f"v_accvgpr_read_b32 {v(SS+2*i+1)}, {ar(240+i)}")
            a(f"v_lshlrev_b32 {v(SS+2*i)}, 16, {v(SS+2*i+1)}")
            a(f"v_and_b32 {v(SS+2*i+1)}, 0xffff0000, {v(SS+2*i+1)}")
        self.splitk(28, lambda ap, ks: ar(112*ap+4*ks, 4), sT4, acc, BR, 40, False)
        H = acc + 48
        for i in range(16): a(f"v_fma_f32 {v(H+i)}, {v(H+i)}, {v(12)}, {v(SS+i)}")
        for i in range(8): a(f"v_cvt_pk_bf16_f32 {v(H+i)}, {v(H+2*i)}, {v(H+2*i+1)}")
        a(f"v_and_b32 {v(vT)}, 31, v0")
        a(f"v_lshlrev_b32 {v(vT)}, 10, {v(vT)}")
        a(f"v_lshrrev_b32 {v(vT2)}, 5, v0")
        a(f"v_lshl_add_u32 {v(vT)}, {v(vT2)}, 4, {v(vT)}")
        a(f"s_lshl_b32 s{sT0}, s{sB}, 15")
        a(f"s_lshl1_add_u32 s{sT1}, s{sCG}, s{sR}")
        a(f"s_lshl_b32 s{sT1}, s{sT1}, 6")
        a(f"s_add_u32 s{sT0}, s{sT0}, s{sT1}")
        for g in range(2):
            a(f"v_permlane32_swap_b32 {v(H+4*g)}, {v(H+4*g+2)}")
            a(f"v_permlane32_swap_b32 {v(H+4*g+1)}, {v(H+4*g+3)}")
            a.vmem(f"buffer_store_dwordx4 {v(H+4*g,4)}, {v(vT)}, {srd(SOUT)}, s{sT0} offen offset:{32*g}", "out")

    def build(self):
        a = self.a
        self.tail = []
        a.launch_single(256, 256, 163840)
        a.begin_kernel(NAME)
        self.prologue()
        self.p1()
        self.t_run()
        self.stamp()
        for k, ph in ((2, self.p2), (3, self.p3), (4, self.p4), (5, self.p5)):
            if self.stop >= k:
                a.c(f"---- phase {k}")
                ph()
        if self.ts:
            a("s_waitcnt vmcnt(0)")
            self.stamp()
            a(f"s_lshl2_add_u32 s{sT0}, s2, s{sW}")
            a(f"s_lshl_b32 s{sT0}, s{sT0}, 7")
            a(f"s_add_u32 s{sT0}, s{sT0}, {TS}")
            for i in range(self.nts):
                a(f"v_mov_b32 v10, s{sTS+i}")
                a(f"buffer_store_dword v10, {v(self.vZ)}, {srd(SWS)}, s{sT0} offen offset:{4*i}")
            a("s_memrealtime s[4:5]")
            a("s_waitcnt lgkmcnt(0)")
            a("v_mov_b32 v10, s4")
            a(f"buffer_store_dword v10, {v(self.vZ)}, {srd(SWS)}, s{sT0} offen offset:124")
        a("s_waitcnt vmcnt(0)")
        a.label("L_end")
        a("s_endpgm")
        for f in self.tail: f()
        a.end_kernel(NAME, vgpr=512, sgpr=102, accum=256)
        a.fix_hazards(verbose=False)
        hdr = open("cdna_kernels/" + NAME[:-7] + ".s.ref").read().split("; Override")[0].rstrip("\n")
        hdr = "\n".join(l[2:] for l in hdr.split("\n"))
        return a.text(hdr)

if __name__ == "__main__":
    import argparse
    p = argparse.ArgumentParser()
    p.add_argument("-o", default="cdna_kernels/" + NAME[:-7] + ".s")
    p.add_argument("--stop", type=int, default=99)
    p.add_argument("--ts", action="store_true")
    args = p.parse_args()
    g = G(args.stop, args.ts)
    t = g.build()
    open(args.o, "w").write(t)
    print("lines", t.count("\n"), "nops added", g.a.nops_added)
```
